```python
import torch

def _softmax(x, axis=-1):
    return torch.softmax(x, dim=axis)
def _gelu(x):
    return torch.nn.functional.gelu(x, approximate="tanh")
def _silu(x):
    return torch.nn.functional.silu(x)
def _sigmoid(x):
    return torch.sigmoid(x)
def _layernorm(x, axis=-1, eps=1e-5):
    m = x.mean(dim=axis, keepdim=True)
    v = x.var(dim=axis, keepdim=True, unbiased=False)
    return (x - m) / torch.sqrt(v + eps)
def _scatter_add(tgt, idx, src, axis=0):
    return tgt.clone().index_add_(axis, idx, src)
def _segment_sum(src, seg, n):
    out = torch.zeros((n,) + src.shape[1:], dtype=src.dtype)
    return out.index_add_(0, seg, src)
def _pad(x, pw):
    flat = tuple(v for pair in reversed(pw) for v in pair)
    return torch.nn.functional.pad(x, flat)

kernel_name = 'standalone__gqa_softmax__sampling'

def setup_inputs():

    _w = (lambda a: (lambda t: t.to(torch.bfloat16) if t.is_floating_point() else t)(torch.as_tensor(a)))
    B, Hq, Hkv, Sq, Sk, D = 8, 32, 8, 1, 4096, 128
    return {
        "q": _w((lambda *s: torch.randn(*s, dtype=torch.bfloat16) * 0.8)(B, Hq, Sq, D)),
        "k": _w((lambda *s: torch.randn(*s, dtype=torch.bfloat16) * 0.8)(B, Hkv, Sk, D)),
        "v": _w((lambda *s: torch.randn(*s, dtype=torch.bfloat16) * 0.05)(B, Hkv, Sk, D)),
    }

def reference(q, k, v):
    B, Hq, Sq, D = q.shape
    Hkv = k.shape[1]
    rep = Hq // Hkv
    k = (lambda x, n, axis: torch.repeat_interleave(x, n, dim=axis))(k, rep, axis=1)
    v = (lambda x, n, axis: torch.repeat_interleave(x, n, dim=axis))(v, rep, axis=1)
    scale = D ** -0.5
    scores = torch.einsum("bhqd,bhkd->bhqk", q, k) * scale
    p = _softmax(scores, axis=-1)
    return torch.einsum("bhqk,bhkd->bhqd", p, v)
```

```python
import sys, math

KN = "standalone__gqa_softmax__sampling"
HEADER = """; Kernarg layout for this problem (48 bytes, ptrs only, base s[0:1]):
"""

import struct
def f2u(x):
    return struct.unpack("<I", struct.pack("<f", x))[0]

class Gen:
    def __init__(self, **kw):
        self.p = dict(NW=8, R=9, inter=1, kpol="nt", vpol="nt", mode="2k", compute=1, stamps=0, pf=0, pad=0)
        self.p.update(kw)
        self.L = []
    def e(self, s=""):
        self.L.append(s)

    def gen(self):
        p = self.p; e = self.e
        NW = p["NW"]; R = p["R"]; T = 64 // NW
        mode = p["mode"]
        kpol = (" " + p["kpol"]) if p["kpol"] else ""
        vpol = (" " + p["vpol"]) if p["vpol"] else ""
        vTID, vLANE, vKOFF, vVOFF, vQOFF, vT0, vT1, vM, vL = 0, 1, 2, 3, 4, 5, 6, 7, 8
        vMC = 9
        vA0 = 10
        Q = 16
        S = 32
        ACC = S + T * 4
        TMP = ACC + 32
        RING = TMP + 16
        NV = RING + R * 16
        assert NV <= 512 // (NW // 4), (NV, NW)
        assert NV <= 256
        SLOT = 2048 + 64
        SLOT = 4096
        lds_o = 0
        lds_m = NW * 2048
        lds_l = lds_m + 4 * NW * 4
        LDS = lds_l + 4 * NW * 4
        tile_stride = (NW * 4096) if p["inter"] else 4096
        wave_stride = 4096 if p["inter"] else T * 4096
        self.L.append(HEADER.rstrip())
        if mode == "2k":
            e(f"; @launch kernel={KN}_kernel grid=(256,1,1) block=({NW*64},1,1) lds={LDS}")
            e(f"; @launch kernel=combine_kernel grid=(64,1,1) block=(128,1,1) lds=0")
        else:
            e(f"; @launch grid=(256,1,1) block=({NW*64},1,1) lds={LDS}")
        e('.amdgcn_target "amdgcn-amd-amdhsa--gfx950"')
        e(".text")
        e(f".globl {KN}_kernel")
        e(".p2align 8")
        e(f".type {KN}_kernel,@function")
        e(f"{KN}_kernel:")
        e("    s_cmp_ge_u32 s2, 256")
        e("    s_cbranch_scc1 L_end")
        self.stamp(0)
        if p["pad"]:
            e("    s_memrealtime s[78:79]")
        e("    s_load_dwordx4 s[4:7], s[0:1], 0        ; q, k")
        e("    s_load_dwordx4 s[8:11], s[0:1], 16      ; v, out")
        e("    s_load_dwordx4 s[12:15], s[0:1], 32")
        if p["pf"]:
            e("    s_getpc_b64 s[36:37]")
            e("    v_lshlrev_b32 v5, 7, v0")
            e("    v_cmp_gt_u32 vcc, %d, v0" % p["pf"])
            e("    s_and_saveexec_b64 s[58:59], vcc")
            e("    s_cbranch_execz L_nopf")
            e("    global_load_dword v15, v5, s[36:37]")
            e("L_nopf:")
            e("    s_mov_b64 exec, -1")
        e("    v_lshrrev_b32 v5, 6, v0")
        e("    v_and_b32 v1, 63, v0                    ; lane")
        e("    v_readfirstlane_b32 s3, v5")
        e("    v_and_b32 v5, 3, v1")
        e("    v_lshlrev_b32 v2, 10, v5                ; (i&3)*4 rows * 256 B")
        e("    v_lshlrev_b32 v4, 8, v5")
        e("    v_bfe_u32 v5, v1, 2, 2")
        e("    v_lshl_add_u32 v2, v5, 8, v2            ; + (i>>2)*256")
        e("    v_lshrrev_b32 v6, 4, v1                 ; g")
        e("    v_lshl_add_u32 v2, v6, 4, v2            ; + g*16")
        e("    v_lshl_add_u32 v4, v6, 4, v4            ; q offset + g*16")
        e("    v_lshlrev_b32 v3, 4, v1")
        e(f"    s_mul_i32 s40, s3, {wave_stride}")
        e("    s_lshl_b32 s41, s2, 18")
        e("    s_add_u32 s40, s40, s41")
        for t in range(1, T):
            e(f"    s_add_u32 s{40+t}, s40, {t*tile_stride}")
        e("    s_lshr_b32 s38, s2, 2                   ; pair")
        e("    s_lshl_b32 s39, s38, 10")
        e("    s_mov_b32 s18, 0x4000000")
        e("    s_mov_b32 s19, 0x20000")
        e("    s_mov_b32 s22, 0x4000000")
        e("    s_mov_b32 s23, 0x20000")
        e("    s_mov_b32 s26, 0x10000")
        e("    s_mov_b32 s27, 0x20000")
        e("    s_waitcnt lgkmcnt(0)")
        self.stamp(1)
        e("    s_mov_b32 s16, s6")
        e("    s_mov_b32 s17, s7")
        e("    s_mov_b32 s24, s4")
        e("    s_mov_b32 s25, s5")
        e("    s_mov_b32 s20, s8")
        e("    s_mov_b32 s21, s9")
        issued = []
        def buf(i): return RING + (i % R) * 16
        def issue(i):
            b = buf(i)
            if i < T:
                for m in range(4):
                    e(f"    buffer_load_dwordx4 v[{b+4*m}:{b+4*m+3}], v2, s[16:19], s{40+i} offen offset:{m*64}{kpol}")
                    issued.append(("tile", i))
            else:
                for n in range(4):
                    e(f"    buffer_load_dwordx4 v[{b+4*n}:{b+4*n+3}], v3, s[20:23], s{40+i-T} offen offset:{n*1024}{vpol}")
                    issued.append(("tile", i))
        def wait(tag):
            last = max(j for j, x in enumerate(issued) if x == tag)
            n = len(issued) - 1 - last
            e(f"    s_waitcnt vmcnt({min(n,63)})")
        issue(0)
        for m in range(4):
            e(f"    buffer_load_dwordx4 v[{Q+4*m}:{Q+4*m+3}], v4, s[24:27], s39 offen offset:{m*64}")
            issued.append(("q", 0))
        for i in range(1, min(R, 2*T)):
            issue(i)
        e("    s_mov_b32 s32, s14")
        e("    s_mov_b32 s33, s15")
        e("    s_mov_b32 s34, 0x200000")
        e("    s_mov_b32 s35, 0x20000")
        e("    s_mov_b32 s60, 0x05040100")
        e("    s_mov_b32 s61, 0x07060302")
        c = (128 ** -0.5) * math.log2(math.e)
        e(f"    s_mov_b32 s62, 0x{f2u(c):08x}            ; scale*log2(e)")
        for t in range(T):
            if t == 0:
                wait(("q", 0))
            else:
                wait(("tile", t))
            if t == 0: self.stamp(2)
            b = buf(t)
            for m in range(4):
                cin = "0" if m == 0 else f"v[{S+4*t}:{S+4*t+3}]"
                e(f"    v_mfma_f32_16x16x32_bf16 v[{S+4*t}:{S+4*t+3}], v[{b+4*m}:{b+4*m+3}], v[{Q+4*m}:{Q+4*m+3}], {cin}")
            if t + R < 2 * T:
                issue(t + R)
        e("    s_nop 7")
        e(f"    v_max3_f32 v{vM}, v{S}, v{S+1}, v{S+2}")
        j = 3
        while j + 1 < 4 * T:
            e(f"    v_max3_f32 v{vM}, v{vM}, v{S+j}, v{S+j+1}")
            j += 2
        e(f"    v_max_f32 v{vM}, v{vM}, v{S+j}")
        def xrow(op, r, t):
            e(f"    v_mov_b32 v{t}, v{r}")
            e("    s_nop 1")
            e(f"    v_permlane16_swap_b32 v{r}, v{t}")
            e(f"    {op} v{r}, v{r}, v{t}")
            e(f"    v_mov_b32 v{t}, v{r}")
            e("    s_nop 1")
            e(f"    v_permlane32_swap_b32 v{r}, v{t}")
            e(f"    {op} v{r}, v{r}, v{t}")
        xrow("v_max_f32", vM, vT0)
        e(f"    v_and_b32 v{vA0}, 3, v1")
        e(f"    v_mul_u32_u24 v{vA0}, {NW*4}, v{vA0}       ; h*NW*4")
        e(f"    s_lshl_b32 s63, s3, 2")
        e(f"    v_add_u32 v{vA0+1}, s63, v{vA0}")
        e("    s_mov_b64 exec, 15")
        e(f"    ds_write_b32 v{vA0+1}, v{vM} offset:{lds_m}")
        e("    s_mov_b64 exec, -1")
        e("    s_waitcnt lgkmcnt(0)")
        e("    s_barrier")
        self.stamp(3)
        for q in range(NW // 4):
            e(f"    ds_read_b128 v[{TMP+4*q}:{TMP+4*q+3}], v{vA0} offset:{lds_m+16*q}")
        e("    s_waitcnt lgkmcnt(0)")
        e(f"    v_max3_f32 v{vM}, v{TMP}, v{TMP+1}, v{TMP+2}")
        j = 3
        while j + 1 < NW:
            e(f"    v_max3_f32 v{vM}, v{vM}, v{TMP+j}, v{TMP+j+1}")
            j += 2
        e(f"    v_max_f32 v{vM}, v{vM}, v{TMP+j}")
        e(f"    v_mul_f32 v{vMC}, s62, v{vM}                 ; m*c")
        for j in range(4 * T):
            e(f"    v_fma_f32 v{S+j}, v{S+j}, s62, -v{vMC}")
        for j in range(4 * T):
            e(f"    v_exp_f32 v{S+j}, v{S+j}")
        e(f"    v_add_f32 v{vL}, v{S}, v{S+1}")
        for j in range(2, 4 * T):
            e(f"    v_add_f32 v{vL}, v{vL}, v{S+j}")
        for t in range(T):
            e(f"    v_cvt_pk_bf16_f32 v{S+4*t}, v{S+4*t}, v{S+4*t+1}")
            e(f"    v_cvt_pk_bf16_f32 v{S+4*t+1}, v{S+4*t+2}, v{S+4*t+3}")
        xrow("v_add_f32", vL, vT0)
        e("    s_mov_b64 exec, 15")
        e(f"    ds_write_b32 v{vA0+1}, v{vL} offset:{lds_l}")
        e("    s_mov_b64 exec, -1")
        for t in range(T):
            wait(("tile", T + t))
            if t == T - 1: self.stamp(4)
            b = buf(T + t)
            for j in range(4):
                e(f"    v_perm_b32 v{TMP+4*j}, v{b+4+j}, v{b+j}, s60")
                e(f"    v_perm_b32 v{TMP+4*j+1}, v{b+12+j}, v{b+8+j}, s60")
                e(f"    v_perm_b32 v{TMP+4*j+2}, v{b+4+j}, v{b+j}, s61")
                e(f"    v_perm_b32 v{TMP+4*j+3}, v{b+12+j}, v{b+8+j}, s61")
            if T + t + R < 2 * T:
                issue(T + t + R)
            for ee in range(8):
                if ee == 7:
                    pass
                cin = "0" if t == 0 else f"v[{ACC+4*ee}:{ACC+4*ee+3}]"
                e(f"    v_mfma_f32_4x4x4_16b_bf16 v[{ACC+4*ee}:{ACC+4*ee+3}], v[{S+4*t}:{S+4*t+1}], v[{TMP+2*ee}:{TMP+2*ee+1}], {cin}")
        e(f"    v_lshlrev_b32 v{vA0+2}, 5, v1               ; lane*32")
        e(f"    s_lshl_b32 s63, s3, 11")
        e(f"    v_add_u32 v{vA0+2}, s63, v{vA0+2}")
        e("    s_nop 1")
        for ee in range(8):
            a = ACC + 4 * ee
            e(f"    v_permlane32_swap_b32 v{a}, v{a+2}")
            e(f"    v_permlane32_swap_b32 v{a+1}, v{a+3}")
        for ee in range(8):
            a = ACC + 4 * ee
            e(f"    v_add_f32 v{a}, v{a}, v{a+2}")
            e(f"    v_add_f32 v{a+1}, v{a+1}, v{a+3}")
        for ee in range(8):
            a = ACC + 4 * ee
            e(f"    v_permlane16_swap_b32 v{a}, v{a+1}")
        for ee in range(8):
            a = ACC + 4 * ee
            e(f"    v_add_f32 v{TMP+ee}, v{a}, v{a+1}")
        e(f"    ds_write_b128 v{vA0+2}, v[{TMP}:{TMP+3}] offset:{lds_o}")
        e(f"    ds_write_b128 v{vA0+2}, v[{TMP+4}:{TMP+7}] offset:{lds_o+16}")
        e("    s_waitcnt lgkmcnt(0)")
        e("    s_barrier")
        self.stamp(5)
        self.flush_stamps()
        e("    s_cmp_ge_u32 s3, 2")
        e("    s_cbranch_scc1 L_end")
        e(f"    v_lshlrev_b32 v{vA0+2}, 4, v0               ; tid*16")
        for w in range(NW):
            e(f"    ds_read_b128 v[{RING+4*w}:{RING+4*w+3}], v{vA0+2} offset:{lds_o + w*2048}")
        for q in range(NW // 4):
            e(f"    ds_read_b128 v[{TMP+4*q}:{TMP+4*q+3}], v{vA0} offset:{lds_l+16*q}")
        e(f"    s_lshl_b32 s63, s2, 12")
        for w in range(1, NW):
            e(f"    s_waitcnt lgkmcnt({min(15, NW - 1 - w + NW // 4)})")
            e(f"    v_pk_add_f32 v[{RING}:{RING+1}], v[{RING}:{RING+1}], v[{RING+4*w}:{RING+4*w+1}]")
            e(f"    v_pk_add_f32 v[{RING+2}:{RING+3}], v[{RING+2}:{RING+3}], v[{RING+4*w+2}:{RING+4*w+3}]")
        sc = " sc1" if mode == "ticket" else ""
        e(f"    buffer_store_dwordx4 v[{RING}:{RING+3}], v{vA0+2}, s[32:35], s63 offen{sc}")
        e("    s_waitcnt lgkmcnt(0)")
        e(f"    v_add_f32 v{vL}, v{TMP}, v{TMP+1}")
        for j in range(2, NW):
            e(f"    v_add_f32 v{vL}, v{vL}, v{TMP+j}")
        e(f"    v_lshlrev_b32 v{vA0+3}, 2, v0")
        if mode == "2k":
            e("    s_cmp_ge_u32 s3, 1")
            e("    s_cbranch_scc1 L_end")
            e("    s_mov_b64 exec, 15")
            e(f"    buffer_store_dword v{vMC}, v{vA0+3}, s[32:35], s63 offen offset:2048")
            e(f"    buffer_store_dword v{vL}, v{vA0+3}, s[32:35], s63 offen offset:2064")
        elif mode == "ticket":
            e(f"    v_and_b32 v{vA0+3}, 12, v{vA0+3}")
            e("    s_mov_b64 exec, 15")
            e(f"    buffer_store_dword v{vMC}, v{vA0+3}, s[32:35], s63 offen offset:2048 sc1")
            e(f"    buffer_store_dword v{vL}, v{vA0+3}, s[32:35], s63 offen offset:2064 sc1")
            e("    s_mov_b64 exec, 1")
            e("    s_lshl_b32 s36, s38, 2")
            e(f"    v_mov_b32 v{vA0+4}, s36")
            e(f"    v_mov_b32 v{vA0+5}, 1")
            e("    s_waitcnt vmcnt(0)")
            e(f"    global_atomic_add v{vA0+5}, v{vA0+4}, v{vA0+5}, s[12:13] sc0 sc1")
            e("    s_waitcnt vmcnt(0)")
            e(f"    v_readfirstlane_b32 s36, v{vA0+5}")
            e("    s_mov_b64 exec, -1")
            e("    s_cmp_lg_u32 s36, 7")
            e("    s_cbranch_scc1 L_end")
            e("    s_lshl_b32 s40, s38, 14")
            e("    s_add_u32 s41, s40, 4096")
            e("    s_add_u32 s42, s40, 8192")
            e("    s_add_u32 s43, s40, 12288")
            e("    v_lshlrev_b32 v2, 5, v1                 ; lane*32")
            e("    v_lshrrev_b32 v3, 4, v1")
            e("    v_lshlrev_b32 v3, 2, v3                 ; head*4")
            for sp in range(4):
                e(f"    buffer_load_dword v{16+sp}, v3, s[32:35], s{40+sp} offen offset:2048 sc1")
                e(f"    buffer_load_dword v{20+sp}, v3, s[32:35], s{40+sp} offen offset:2064 sc1")
            for sp in range(4):
                e(f"    buffer_load_dwordx4 v[{32+8*sp}:{35+8*sp}], v2, s[32:35], s{40+sp} offen sc1")
                e(f"    buffer_load_dwordx4 v[{36+8*sp}:{39+8*sp}], v2, s[32:35], s{40+sp} offen offset:16 sc1")
            e("    s_mov_b32 s28, s10")
            e("    s_mov_b32 s29, s11")
            e("    s_mov_b32 s30, 0x10000")
            e("    s_mov_b32 s31, 0x20000")
            e("    v_lshlrev_b32 v4, 4, v1")
            e("    s_waitcnt vmcnt(8)")
            e("    v_max3_f32 v24, v16, v17, v18")
            e("    v_max_f32 v24, v24, v19")
            for sp in range(4):
                e(f"    v_sub_f32 v{16+sp}, v{16+sp}, v24")
            for sp in range(4):
                e(f"    v_exp_f32 v{16+sp}, v{16+sp}")
            e("    s_nop 0")
            e("    v_mul_f32 v25, v16, v20")
            e("    v_fmac_f32 v25, v17, v21")
            e("    v_fmac_f32 v25, v18, v22")
            e("    v_fmac_f32 v25, v19, v23")
            e("    v_rcp_f32 v25, v25")
            e("    s_nop 0")
            for sp in range(4):
                e(f"    v_mul_f32 v{16+sp}, v{16+sp}, v25")
            e("    s_waitcnt vmcnt(0)")
            for j in range(8):
                e(f"    v_mul_f32 v{64+j}, v16, v{32+j}")
            for sp in range(1, 4):
                for j in range(8):
                    e(f"    v_fmac_f32 v{64+j}, v{16+sp}, v{32+8*sp+j}")
            for j in range(4):
                e(f"    v_cvt_pk_bf16_f32 v{72+j}, v{64+2*j}, v{65+2*j}")
            e("    buffer_store_dwordx4 v[72:75], v4, s[28:31], s39 offen")
        e("L_end:")
        if p["pad"]:
            e("    s_cmp_ge_u32 s2, 256")
            e("    s_cbranch_scc1 L_end2")
            e("    s_waitcnt vmcnt(0) lgkmcnt(0)")
            e(f"    s_add_u32 s78, s78, {p['pad']}")
            e("L_spin:")
            e("    s_memrealtime s[76:77]")
            e("    s_waitcnt lgkmcnt(0)")
            e("    s_sub_u32 s76, s76, s78")
            e("    s_cmp_lt_i32 s76, 0")
            e("    s_cbranch_scc1 L_spin")
            e("L_end2:")
        e("    s_endpgm")
        if mode == "2k":
            self.combine()
        e('.section .rodata,"a"')
        self.desc(f"{KN}_kernel", NV)
        if mode == "2k":
            self.desc("combine_kernel", 40)
        return "\n".join(self.L) + "\n"

    def stamp(self, i):
        if self.p["stamps"]:
            self.e(f"    s_memrealtime s[{64+2*i}:{65+2*i}]")
    def flush_stamps(self):
        if not self.p["stamps"]:
            return
        e = self.e
        e("    s_waitcnt lgkmcnt(0)")
        e("    s_lshl_b32 s63, s2, 4")
        e("    s_add_u32 s63, s63, s3")
        e("    s_lshl_b32 s63, s63, 6")
        e("    s_add_u32 s63, s63, 0x400000")
        e("    s_mov_b32 s34, 0x800000")
        e("    v_mov_b32 v14, 0")
        e("    s_mov_b64 exec, 1")
        e("    s_getreg_b32 s76, hwreg(HW_REG_XCC_ID)")
        e("    s_getreg_b32 s77, hwreg(HW_REG_HW_ID)")
        for i in range(7):
            e(f"    v_mov_b32 v12, s{64+2*i}")
            e(f"    v_mov_b32 v13, s{65+2*i}")
            e(f"    buffer_store_dwordx2 v[12:13], v14, s[32:35], s63 offen offset:{8*i}")
            e("    s_nop 1")
        e("    s_mov_b64 exec, -1")

    def desc(self, name, nv):
        e = self.e
        e(".p2align 6")
        e(f".amdhsa_kernel {name}")
        e(f"  .amdhsa_next_free_vgpr {nv}")
        e("  .amdhsa_next_free_sgpr 90")
        e(f"  .amdhsa_accum_offset {(nv + 3) // 4 * 4}")
        e("  .amdhsa_group_segment_fixed_size 0")
        e("  .amdhsa_kernarg_size 48")
        e("  .amdhsa_user_sgpr_count 2")
        e("  .amdhsa_user_sgpr_kernarg_segment_ptr 1")
        e("  .amdhsa_system_sgpr_workgroup_id_x 1")
        e(".end_amdhsa_kernel")

    def combine(self):
        e = self.e
        e(".globl combine_kernel")
        e(".p2align 8")
        e(".type combine_kernel,@function")
        e("combine_kernel:")
        e("    s_cmp_ge_u32 s2, 64")
        e("    s_cbranch_scc1 L_cend")
        e("    s_load_dwordx2 s[4:5], s[0:1], 24")
        e("    s_load_dwordx2 s[8:9], s[0:1], 40")
        e("    v_lshlrev_b32 v1, 4, v0                 ; tid*16")
        e("    v_lshrrev_b32 v2, 5, v0                 ; head")
        e("    v_lshlrev_b32 v2, 2, v2")
        e("    v_lshlrev_b32 v3, 3, v0")
        e("    s_lshl_b32 s12, s2, 14")
        e("    s_add_u32 s13, s12, 4096")
        e("    s_add_u32 s14, s12, 8192")
        e("    s_add_u32 s15, s12, 12288")
        e("    s_lshl_b32 s16, s2, 10")
        e("    s_mov_b32 s6, 0x10000")
        e("    s_mov_b32 s7, 0x20000")
        e("    s_mov_b32 s10, 0x200000")
        e("    s_mov_b32 s11, 0x20000")
        e("    s_waitcnt lgkmcnt(0)")
        for s in range(4):
            e(f"    buffer_load_dword v{4+s}, v2, s[8:11], s{12+s} offen offset:2048")
            e(f"    buffer_load_dword v{8+s}, v2, s[8:11], s{12+s} offen offset:2064")
        for s in range(4):
            e(f"    buffer_load_dwordx4 v[{16+4*s}:{19+4*s}], v1, s[8:11], s{12+s} offen")
        e("    s_waitcnt vmcnt(4)")
        e("    v_max3_f32 v12, v4, v5, v6")
        e("    v_max_f32 v12, v12, v7")
        for s in range(4):
            e(f"    v_sub_f32 v{4+s}, v{4+s}, v12")
        for s in range(4):
            e(f"    v_exp_f32 v{4+s}, v{4+s}")
        e("    s_nop 0")
        e("    v_mul_f32 v13, v4, v8")
        e("    v_fmac_f32 v13, v5, v9")
        e("    v_fmac_f32 v13, v6, v10")
        e("    v_fmac_f32 v13, v7, v11")
        e("    v_rcp_f32 v13, v13")
        e("    s_nop 0")
        for s in range(4):
            e(f"    v_mul_f32 v{4+s}, v{4+s}, v13")
        e("    s_waitcnt vmcnt(0)")
        for j in range(4):
            e(f"    v_mul_f32 v{32+j}, v4, v{16+j}")
        for s in range(1, 4):
            for j in range(4):
                e(f"    v_fmac_f32 v{32+j}, v{4+s}, v{16+4*s+j}")
        e("    v_cvt_pk_bf16_f32 v36, v32, v33")
        e("    v_cvt_pk_bf16_f32 v37, v34, v35")
        e("    buffer_store_dwordx2 v[36:37], v3, s[4:7], s16 offen")
        e("L_cend:")
        e("    s_endpgm")

if __name__ == "__main__":
    kw = {}
    out = None
    for a in sys.argv[1:]:
        if "=" in a:
            k, v = a.split("=", 1)
            kw[k] = int(v) if v.lstrip("-").isdigit() else v
        else:
            out = a
    s = Gen(**kw).gen()
    if out:
        open(out, "w").write(s)
    else:
        sys.stdout.write(s)
```

```python
import sys, math, struct
from gen import HEADER, KN
def f2u(x): return struct.unpack("<I", struct.pack("<f", x))[0]

class G:
    def __init__(self, **kw):
        self.p = dict(R=8, pol="nt", grp=1, rot=0, rotsh=0, stamps=0, pad=0, vg=512, mode="poll", cons=3, flagstep=6, lds=0)
        self.p.update(kw); self.L = []
    def e(self, s=""): self.L.append(s)
    def stamp(self, i):
        if self.p["stamps"]: self.e(f"    s_memrealtime s[{64+2*i}:{65+2*i}]")
    def flush_stamps(self):
        if not self.p["stamps"]: return
        e = self.e
        e("    s_waitcnt lgkmcnt(0)")
        e("    s_lshl_b32 s63, s2, 4"); e("    s_add_u32 s63, s63, s3"); e("    s_lshl_b32 s63, s63, 6"); e("    s_add_u32 s63, s63, 0x400000")
        e("    v_mov_b32 v14, 0"); e("    s_mov_b64 exec, 1")
        e("    s_getreg_b32 s76, hwreg(HW_REG_XCC_ID)"); e("    s_getreg_b32 s77, hwreg(HW_REG_HW_ID)")
        for i in range(7):
            e(f"    v_mov_b32 v12, s{64+2*i}"); e(f"    v_mov_b32 v13, s{65+2*i}")
            e(f"    buffer_store_dwordx2 v[12:13], v14, s[32:35], s63 offen offset:{8*i}"); e("    s_nop 1")
        e("    s_mov_b64 exec, -1")

    def gen(self):
        p = self.p; e = self.e
        R = p["R"]; grp = p["grp"]; mode = p["mode"]
        pol = (" " + p["pol"]) if p["pol"] else ""
        NW = 4; T = 16
        assert p['flagstep'] <= 14 - R
        PS = 16384 * grp
        SPAN = 16 * PS
        vM, vL, vMC, vT0 = 7, 8, 9, 5
        vA = 10
        Q = 16; D = 24; S = 40; ACC = 56; TMP = 88; RING = 104
        NV = RING + 16 * R
        assert NV <= 256
        lds_o = 0; lds_m = 8192; lds_l = 8192 + 64; LDS = max(8192 + 128, p["lds"])
        e(HEADER.rstrip())
        e(f"; @launch grid=(256,1,1) block=(256,1,1) lds={LDS}")
        e('.amdgcn_target "amdgcn-amd-amdhsa--gfx950"')
        e(".text"); e(f".globl {KN}_kernel"); e(".p2align 8"); e(f".type {KN}_kernel,@function"); e(f"{KN}_kernel:")
        e("    s_cmp_ge_u32 s2, 256")
        e("    s_cbranch_scc1 L_end")
        self.stamp(0)
        if p["pad"]: e("    s_memrealtime s[78:79]")
        e("    s_load_dwordx4 s[4:7], s[0:1], 0        ; q, k")
        e("    s_load_dwordx4 s[8:11], s[0:1], 16      ; v, out")
        e("    s_load_dwordx4 s[12:15], s[0:1], 32")
        e("    v_lshrrev_b32 v5, 6, v0")
        e("    v_and_b32 v1, 63, v0                    ; lane")
        e("    v_readfirstlane_b32 s3, v5")
        e("    v_lshrrev_b32 v6, 4, v1                 ; g")
        e("    v_lshlrev_b32 v6, 4, v6                 ; g*16")
        e("    v_bfe_u32 v5, v1, 2, 2")
        e("    v_lshl_add_u32 v2, v5, 8, v6            ; K: row (i>>2)*256 + g*16")
        e("    v_and_b32 v5, 1, v1")
        e("    v_lshl_add_u32 v2, v5, 6, v2            ;    + half*64")
        e("    v_bfe_u32 v5, v1, 1, 1")
        e(f"    v_lshl_add_u32 v2, v5, {int(math.log2(PS))}, v2")
        e("    v_lshlrev_b32 v3, 4, v1                 ; V: lane*16")
        e("    v_and_b32 v5, 3, v1")
        e("    v_lshl_add_u32 v4, v5, 8, v6            ; Q: head*256 + g*16")
        e("    v_bfe_u32 v5, v1, 2, 1")
        e("    v_lshl_add_u32 v4, v5, 6, v4            ;    + half*64")
        e("    s_lshr_b32 s38, s2, 2")
        e("    s_and_b32 s37, s2, 3                    ; split")
        e("    s_lshl_b32 s39, s38, 10")
        e("    s_lshl_b32 s40, s3, 12")
        if grp == 1:
            e("    s_lshl_b32 s41, s2, 18")
        else:
            e(f"    s_and_b32 s41, s2, {grp-1}")
            e("    s_lshl_b32 s41, s41, 14")
            e("    s_add_u32 s40, s40, s41")
            e(f"    s_andn2_b32 s41, s2, {grp-1}")
            e("    s_lshl_b32 s41, s41, 18")
        e("    s_add_u32 s40, s40, s41")
        rot = p["rot"]
        if rot:
            e(f"    s_lshr_b32 s42, s2, {p['rotsh']}")
            e(f"    s_mul_i32 s42, s42, {rot*2*PS}")
            e(f"    s_and_b32 s42, s42, {SPAN-1}")
            e("    s_mov_b32 s43, s42")
            e("    s_add_u32 s44, s40, s42")
            e("    s_mov_b32 s45, s44")
        else:
            e("    s_mov_b32 s44, s40")
            e("    s_mov_b32 s45, s40")
        for a, v in ((18, 0x4000000), (19, 0x20000), (22, 0x4000000), (23, 0x20000), (26, 0x10000), (27, 0x20000),
                     (34, 0x800000), (35, 0x20000)):
            e(f"    s_mov_b32 s{a}, 0x{v:x}")
        e("    s_waitcnt lgkmcnt(0)")
        self.stamp(1)
        e("    s_mov_b32 s16, s6"); e("    s_mov_b32 s17, s7")
        e("    s_mov_b32 s24, s4"); e("    s_mov_b32 s25, s5")
        e("    s_mov_b32 s20, s8"); e("    s_mov_b32 s21, s9")
        issued = []
        def buf(i): return RING + (i % R) * 16
        def adv(run, ofs, step):
            if rot:
                e(f"    s_add_u32 s{ofs}, s{ofs}, {step}")
                e(f"    s_and_b32 s{ofs}, s{ofs}, {SPAN-1}")
                e(f"    s_add_u32 s{run}, s40, s{ofs}")
            else:
                e(f"    s_add_u32 s{run}, s{run}, {step}")
        def issue(i):
            b = buf(i)
            if i < T:
                tp = i & 1
                for tt in range(2):
                    for m in range(2):
                        r = b + 8 * tt + 4 * m
                        e(f"    buffer_load_dwordx4 v[{r}:{r+3}], v2, s[16:19], s44 offen offset:{(2*tp+tt)*1024+m*128}{pol}")
                        issued.append(("t", i))
                if tp == 1 and i < T - 1: adv(44, 42, 2 * PS)
            else:
                for k in range(4):
                    e(f"    buffer_load_dwordx4 v[{b+4*k}:{b+4*k+3}], v3, s[20:23], s45 offen offset:{k*1024}{pol}")
                    issued.append(("t", i))
                if i < 2 * T - 1: adv(45, 43, PS)
        def wait(tag, lst=None):
            lst = issued if lst is None else lst
            last = max(j for j, x in enumerate(lst) if x == tag)
            e(f"    s_waitcnt vmcnt({min(len(lst) - 1 - last, 63)})")
        issue(0)
        for m in range(2):
            e(f"    buffer_load_dwordx4 v[{Q+4*m}:{Q+4*m+3}], v4, s[24:27], s39 offen offset:{m*128}")
            issued.append(("q", 0))
        issue(1)
        e("    s_mov_b32 s32, s14"); e("    s_mov_b32 s33, s15")
        e("    s_lshl_b32 s46, s2, 12")
        e("    s_lshl_b32 s47, s3, 9")
        e("    s_add_u32 s46, s46, s47")
        e("    s_lshl_b32 s47, s2, 12")
        e("    s_lshl_b32 s48, s3, 3")
        e("    s_add_u32 s47, s47, s48                 ; ws slot of (workgroup, head): {m, l} at +2048")
        e(f"    v_lshlrev_b32 v{vA+5}, 3, v1               ; lane*8")
        if mode == "poll":
            e(f"    v_mov_b32 v{vA+2}, -1")
            e(f"    v_mov_b32 v{vA+3}, -1")
            e(f"    v_mov_b32 v{vA+4}, 0")
            e(f"    buffer_store_dwordx2 v[{vA+2}:{vA+3}], v{vA+5}, s[32:35], s46 offen sc1")
            e(f"    buffer_store_dwordx2 v[{vA+2}:{vA+3}], v{vA+4}, s[32:35], s47 offen offset:2048 sc1")
            issued.extend([("c", 0)] * 2)
        for i in range(2, R): issue(i)
        e("    s_mov_b32 s60, 0x05040100")
        e("    s_mov_b32 s61, 0x07060302")
        c = (128 ** -0.5) * math.log2(math.e)
        e(f"    s_mov_b32 s62, 0x{f2u(c):08x}            ; scale*log2(e)")
        def dpp(j):
            U = j >> 2; g2 = (j >> 1) & 1; tp = j & 1
            for tt in range(2):
                d = D + 8 * (j & 1) + 4 * tt
                s = S + 4 * U + 2 * tp + tt
                e(f"    v_add_f32_dpp v{s}, v{d+1}, v{d} row_shl:4 row_mask:0xf bank_mask:0x{1 << (2*g2):x}")
                e(f"    v_add_f32_dpp v{s}, v{d+2}, v{d+3} row_shr:4 row_mask:0xf bank_mask:0x{2 << (2*g2):x}")
        for j in range(T):
            wait(("q", 0) if j == 0 else ("t", j))
            if j == 0: self.stamp(2)
            b = buf(j)
            for tt in range(2):
                d = D + 8 * (j & 1) + 4 * tt
                e(f"    v_mfma_f32_16x16x32_bf16 v[{d}:{d+3}], v[{b+8*tt}:{b+8*tt+3}], v[{Q}:{Q+3}], 0")
                e(f"    v_mfma_f32_16x16x32_bf16 v[{d}:{d+3}], v[{b+8*tt+4}:{b+8*tt+7}], v[{Q+4}:{Q+7}], v[{d}:{d+3}]")
            issue(j + R)
            if j > 0: dpp(j - 1)
        e("    s_nop 3")
        dpp(T - 1)
        e(f"    v_max3_f32 v{vM}, v{S}, v{S+1}, v{S+2}")
        j = 3
        while j + 1 < T:
            e(f"    v_max3_f32 v{vM}, v{vM}, v{S+j}, v{S+j+1}"); j += 2
        e(f"    v_max_f32 v{vM}, v{vM}, v{S+j}")
        def allred(op, r, t):
            e("    s_nop 1")
            e(f"    {op}_dpp v{r}, v{r}, v{r} row_ror:4 row_mask:0xf bank_mask:0xf")
            e("    s_nop 1")
            e(f"    {op}_dpp v{r}, v{r}, v{r} row_ror:8 row_mask:0xf bank_mask:0xf")
            e(f"    v_mov_b32 v{t}, v{r}")
            e("    s_nop 1")
            e(f"    v_permlane16_swap_b32 v{r}, v{t}")
            e(f"    {op} v{r}, v{r}, v{t}")
            e(f"    v_mov_b32 v{t}, v{r}")
            e("    s_nop 1")
            e(f"    v_permlane32_swap_b32 v{r}, v{t}")
            e(f"    {op} v{r}, v{r}, v{t}")
        allred("v_max_f32", vM, vT0)
        e(f"    v_and_b32 v{vA}, 3, v1")
        e(f"    v_lshlrev_b32 v{vA}, 4, v{vA}               ; head*16")
        e("    s_lshl_b32 s63, s3, 2")
        e(f"    v_add_u32 v{vA+1}, s63, v{vA}")
        e("    s_mov_b64 exec, 15")
        e(f"    ds_write_b32 v{vA+1}, v{vM} offset:{lds_m}")
        e("    s_mov_b64 exec, -1")
        e("    s_waitcnt lgkmcnt(0)")
        e("    s_barrier")
        self.stamp(3)
        e(f"    ds_read_b128 v[{TMP}:{TMP+3}], v{vA} offset:{lds_m}")
        if mode == "poll":
            e("    s_lshl_b32 s36, s38, 2")
            e(f"    s_cmp_eq_u32 s37, {p['cons']}")
            e("    s_cbranch_scc1 L_noflag")
            e("    s_cmp_lg_u32 s3, 0")
            e("    s_cbranch_scc1 L_noflag")
            e("    s_mov_b64 exec, 1")
            e(f"    v_mov_b32 v{vA+2}, s36")
            e(f"    v_mov_b32 v{vA+3}, 1")
            e(f"    global_atomic_add v{vA+2}, v{vA+3}, s[12:13] sc1")
            e("    s_mov_b64 exec, -1")
            e("L_noflag:")
        e("    s_waitcnt lgkmcnt(0)")
        e(f"    v_max3_f32 v{vM}, v{TMP}, v{TMP+1}, v{TMP+2}")
        e(f"    v_max_f32 v{vM}, v{vM}, v{TMP+3}")
        e(f"    v_mul_f32 v{vMC}, s62, v{vM}                 ; m*c")
        for j in range(T): e(f"    v_fma_f32 v{S+j}, v{S+j}, s62, -v{vMC}")
        for j in range(T): e(f"    v_exp_f32 v{S+j}, v{S+j}")
        e(f"    v_add_f32 v{vL}, v{S}, v{S+1}")
        for j in range(2, T): e(f"    v_add_f32 v{vL}, v{vL}, v{S+j}")
        for U in range(4):
            e(f"    v_cvt_pk_bf16_f32 v{S+4*U}, v{S+4*U}, v{S+4*U+1}")
            e(f"    v_cvt_pk_bf16_f32 v{S+4*U+1}, v{S+4*U+2}, v{S+4*U+3}")
        allred("v_add_f32", vL, vT0)
        e("    s_mov_b64 exec, 15")
        e(f"    ds_write_b32 v{vA+1}, v{vL} offset:{lds_l}")
        e("    s_mov_b64 exec, -1")
        extra = 1 if mode == "poll" else 0
        def pv(u, lst):
            b = buf(T + u); U = u >> 2
            for j in range(4):
                e(f"    v_perm_b32 v{TMP+4*j}, v{b+4+j}, v{b+j}, s60")
                e(f"    v_perm_b32 v{TMP+4*j+1}, v{b+12+j}, v{b+8+j}, s60")
                e(f"    v_perm_b32 v{TMP+4*j+2}, v{b+4+j}, v{b+j}, s61")
                e(f"    v_perm_b32 v{TMP+4*j+3}, v{b+12+j}, v{b+8+j}, s61")
            if mode == "poll" and u == p["flagstep"]:
                e(f"    v_mov_b32 v{vA+2}, s36")
                e(f"    global_load_dword v{vA+4}, v{vA+2}, s[12:13] sc1")
                issued.append(("f", 0))
            if T + u + R < 2 * T: issue(T + u + R)
            for ee in range(8):
                cin = "0" if u == 0 else f"v[{ACC+4*ee}:{ACC+4*ee+3}]"
                e(f"    v_mfma_f32_4x4x4_16b_bf16 v[{ACC+4*ee}:{ACC+4*ee+3}], v[{S+4*U}:{S+4*U+1}], v[{TMP+2*ee}:{TMP+2*ee+1}], {cin} cbsz:2 abid:{u&3}")
        def reduce_wave():
            e(f"    v_lshlrev_b32 v{vA+2}, 5, v1               ; lane*32")
            e("    s_lshl_b32 s63, s3, 11")
            e(f"    v_add_u32 v{vA+2}, s63, v{vA+2}")
            e("    s_nop 1")
            for ee in range(8):
                a = ACC + 4 * ee
                e(f"    v_permlane32_swap_b32 v{a}, v{a+2}")
                e(f"    v_permlane32_swap_b32 v{a+1}, v{a+3}")
            for ee in range(8):
                a = ACC + 4 * ee
                e(f"    v_add_f32 v{a}, v{a}, v{a+2}")
                e(f"    v_add_f32 v{a+1}, v{a+1}, v{a+3}")
            for ee in range(8):
                a = ACC + 4 * ee
                e(f"    v_permlane16_swap_b32 v{a}, v{a+1}")
            for ee in range(8):
                a = ACC + 4 * ee
                e(f"    v_add_f32 v{TMP+ee}, v{a}, v{a+1}")
            e(f"    ds_write_b128 v{vA+2}, v[{TMP}:{TMP+3}] offset:{lds_o}")
            e(f"    ds_write_b128 v{vA+2}, v[{TMP+4}:{TMP+7}] offset:{lds_o+16}")
            e("    s_lshl_b32 s63, s3, 9")
            e(f"    v_add_u32 v{vA+2}, s63, v{vA+5}")
            e("    s_lshl_b32 s63, s3, 4")
            e(f"    v_mov_b32 v{vA+3}, s63")
            e("    s_waitcnt lgkmcnt(0)")
            e("    s_barrier")
            for w in range(4):
                e(f"    ds_read_b64 v[{TMP+2*w}:{TMP+2*w+1}], v{vA+2} offset:{lds_o+2048*w}")
            e(f"    ds_read_b128 v[{TMP+8}:{TMP+11}], v{vA+3} offset:{lds_l}")
            e(f"    v_readlane_b32 s49, v{vMC}, s3")
            e("    s_waitcnt lgkmcnt(3)")
            e(f"    v_pk_add_f32 v[{TMP}:{TMP+1}], v[{TMP}:{TMP+1}], v[{TMP+2}:{TMP+3}]")
            e("    s_waitcnt lgkmcnt(1)")
            e(f"    v_pk_add_f32 v[{TMP+4}:{TMP+5}], v[{TMP+4}:{TMP+5}], v[{TMP+6}:{TMP+7}]")
            e("    s_waitcnt lgkmcnt(0)")
            e(f"    v_add_f32 v{TMP+8}, v{TMP+8}, v{TMP+9}")
            e(f"    v_add_f32 v{TMP+10}, v{TMP+10}, v{TMP+11}")
            e(f"    v_pk_add_f32 v[{TMP}:{TMP+1}], v[{TMP}:{TMP+1}], v[{TMP+4}:{TMP+5}]")
            e(f"    v_add_f32 v{TMP+3}, v{TMP+8}, v{TMP+10}        ; l")
            e(f"    v_mov_b32 v{TMP+2}, s49                     ; m*c")
        for u in range(T - 1):
            wait(("t", T + u))
            pv(u, issued)
        PB = D
        cons = p["cons"]
        others = [s for s in range(4) if s != cons]
        if mode == "poll":
            e(f"    s_cmp_lg_u32 s37, {cons}")
            e("    s_cbranch_scc1 L_prod")
            e("    s_lshl_b32 s50, s38, 14")
            e("    s_lshl_b32 s51, s3, 9")
            e("    s_lshl_b32 s52, s3, 3")
            e("    s_add_u32 s51, s51, s50")
            e("    s_add_u32 s52, s52, s50")
            for n, s in enumerate(others):
                e(f"    s_add_u32 s{53+n}, s51, {s*4096}")
                e(f"    s_add_u32 s{56+n}, s52, {s*4096}")
            e(f"    v_readfirstlane_b32 s59, v{vA+4}")
            e(f"    v_mov_b32 v{vA+3}, 0")
            e("    s_mov_b32 s80, 0x40000                  ; bound on the number of polls")
            e("    s_cmp_ge_u32 s59, 3")
            e("    s_cbranch_scc1 L_flag_ok")
            e("L_flag_spin:")
            e("    s_sub_u32 s80, s80, 1")
            e("    s_cbranch_scc1 L_flag_ok")
            e(f"    v_mov_b32 v{vA+2}, s36")
            e(f"    global_load_dword v{vA+4}, v{vA+2}, s[12:13] sc1")
            e("    s_waitcnt vmcnt(0)")
            e(f"    v_readfirstlane_b32 s59, v{vA+4}")
            e("    s_cmp_ge_u32 s59, 3")
            e("    s_cbranch_scc0 L_flag_spin")
            e("L_flag_ok:")
            def poll_loads(zero):
                for n in range(3):
                    e(f"    buffer_load_dwordx2 v[{PB+4*n}:{PB+4*n+1}], v{vA+5}, s[32:35], s{53+n} offen sc1")
                    e(f"    buffer_load_dwordx2 v[{PB+4*n+2}:{PB+4*n+3}], v{zero}, s[32:35], s{56+n} offen offset:2048 sc1")
            poll_loads(vA + 3)
            e("    s_waitcnt vmcnt(6)")
            self.stamp(4)
            pv(T - 1, None)
            e("    s_mov_b32 s28, s10"); e("    s_mov_b32 s29, s11"); e("    s_mov_b32 s30, 0x10000"); e("    s_mov_b32 s31, 0x20000")
            reduce_wave()
            e("    s_lshl_b32 s63, s3, 8")
            e("    s_add_u32 s63, s63, s39")
            e(f"    v_lshlrev_b32 v{vA+1}, 2, v1")
            e(f"    v_mov_b32 v{vA+3}, 0")
            e("L_poll:")
            e("    s_waitcnt vmcnt(0)")
            e(f"    v_max3_u32 v{vA+4}, v{PB}, v{PB+1}, v{PB+2}")
            for j in range(3, 11, 2):
                e(f"    v_max3_u32 v{vA+4}, v{vA+4}, v{PB+j}, v{PB+j+1}")
            e(f"    v_max_u32 v{vA+4}, v{vA+4}, v{PB+11}")
            e(f"    v_cmp_eq_u32 vcc, -1, v{vA+4}")
            e("    s_cbranch_vccz L_have")
            e("    s_sub_u32 s80, s80, 1")
            e("    s_cbranch_scc1 L_have")
            poll_loads(vA + 3)
            e("    s_branch L_poll")
            e("L_have:")
            ms = [TMP + 2] + [PB + 4 * n + 2 for n in range(3)]
            ls = [TMP + 3] + [PB + 4 * n + 3 for n in range(3)]
            os_ = [TMP] + [PB + 4 * n for n in range(3)]
            e(f"    v_max3_f32 v{vM}, v{ms[0]}, v{ms[1]}, v{ms[2]}")
            e(f"    v_max_f32 v{vM}, v{vM}, v{ms[3]}")
            for s in range(4): e(f"    v_sub_f32 v{ms[s]}, v{ms[s]}, v{vM}")
            for s in range(4): e(f"    v_exp_f32 v{ms[s]}, v{ms[s]}")
            e("    s_nop 0")
            e(f"    v_mul_f32 v{vL}, v{ms[0]}, v{ls[0]}")
            e(f"    v_mul_f32 v{TMP+4}, v{ms[0]}, v{os_[0]}")
            e(f"    v_mul_f32 v{TMP+5}, v{ms[0]}, v{os_[0]+1}")
            for s in range(1, 4):
                e(f"    v_fmac_f32 v{vL}, v{ms[s]}, v{ls[s]}")
            e(f"    v_rcp_f32 v{vL}, v{vL}")
            for s in range(1, 4):
                e(f"    v_fmac_f32 v{TMP+4}, v{ms[s]}, v{os_[s]}")
                e(f"    v_fmac_f32 v{TMP+5}, v{ms[s]}, v{os_[s]+1}")
            e(f"    v_mul_f32 v{TMP+4}, v{TMP+4}, v{vL}")
            e(f"    v_mul_f32 v{TMP+5}, v{TMP+5}, v{vL}")
            e(f"    v_cvt_pk_bf16_f32 v{TMP+4}, v{TMP+4}, v{TMP+5}")
            e(f"    buffer_store_dword v{TMP+4}, v{vA+1}, s[28:31], s63 offen")
            self.stamp(5); self.flush_stamps()
            e("    s_branch L_end")
            e("L_prod:")
            e("    s_waitcnt vmcnt(0)")
            self.stamp(4)
            pv(T - 1, None)
            reduce_wave()
            e("    s_mov_b32 s63, -2")
            for j in range(4): e(f"    v_min_u32 v{TMP+j}, s63, v{TMP+j}")
            e(f"    v_mov_b32 v{vA+4}, 0")
            e(f"    buffer_store_dwordx2 v[{TMP}:{TMP+1}], v{vA+5}, s[32:35], s46 offen sc1")
            e("    s_mov_b64 exec, 1")
            e(f"    buffer_store_dwordx2 v[{TMP+2}:{TMP+3}], v{vA+4}, s[32:35], s47 offen offset:2048 sc1")
            e("    s_mov_b64 exec, -1")
            self.stamp(5); self.flush_stamps()
        e("L_end:")
        if p["pad"]:
            e("    s_cmp_ge_u32 s2, 256"); e("    s_cbranch_scc1 L_end2")
            e("    s_waitcnt vmcnt(0) lgkmcnt(0)")
            e(f"    s_add_u32 s78, s78, {p['pad']}")
            e("L_spin:"); e("    s_memrealtime s[76:77]"); e("    s_waitcnt lgkmcnt(0)")
            e("    s_sub_u32 s76, s76, s78"); e("    s_cmp_lt_i32 s76, 0"); e("    s_cbranch_scc1 L_spin"); e("L_end2:")
        e("    s_endpgm")
        nv = max(NV, p["vg"])
        e('.section .rodata,"a"'); e(".p2align 6"); e(f".amdhsa_kernel {KN}_kernel")
        e(f"  .amdhsa_next_free_vgpr {nv}"); e("  .amdhsa_next_free_sgpr 90"); e(f"  .amdhsa_accum_offset {min(256, (nv+3)//4*4)}")
        e("  .amdhsa_group_segment_fixed_size 0"); e("  .amdhsa_kernarg_size 48"); e("  .amdhsa_user_sgpr_count 2")
        e("  .amdhsa_user_sgpr_kernarg_segment_ptr 1"); e("  .amdhsa_system_sgpr_workgroup_id_x 1"); e(".end_amdhsa_kernel")
        return "\n".join(self.L) + "\n"

if __name__ == "__main__":
    kw = {}; out = None
    for a in sys.argv[1:]:
        if "=" in a:
            k, v = a.split("=", 1); kw[k] = int(v) if v.lstrip("-").isdigit() else v
        else: out = a
    open(out, "w").write(G(**kw).gen())
```

```python
import sys, math, struct
from gen import HEADER, KN
def f2u(x): return struct.unpack("<I", struct.pack("<f", x))[0]

DOC = """;
; Split-key decode attention.  256 workgroups of 4 waves; region = (id%8)*32 + id/8, pair (batch, kv head) = region/4,
; split = region%4 owns 1024 keys.  A wave streams 16 K pieces, then 16 V pieces (4 KiB = 16 keys each).
; slot (same L2); any other producer stores write-through into a second slot and then sets a device-scope flag."""

class G:
    def __init__(self, **kw):
        self.p = dict(R=5, pol="nt", stamps=0, vg=512, cons=3, swz=1, force_slow=0, bound=0x100000, sigbar=2, sigld=10)
        self.p.update(kw); self.L = []
    def e(self, s=""): self.L.append(s)
    def stamp(self, i):
        if self.p["stamps"]: self.e(f"    s_memrealtime s[{64+2*i}:{65+2*i}]")
    def flush_stamps(self):
        if not self.p["stamps"]: return
        e = self.e
        e("    s_waitcnt lgkmcnt(0)")
        e("    s_lshl_b32 s63, s2, 4"); e("    s_add_u32 s63, s63, s3"); e("    s_lshl_b32 s63, s63, 6"); e("    s_add_u32 s63, s63, 0x400000")
        e("    v_mov_b32 v14, 0"); e("    s_mov_b64 exec, 1")
        e("    s_getreg_b32 s76, hwreg(HW_REG_XCC_ID)"); e("    s_getreg_b32 s77, hwreg(HW_REG_HW_ID)")
        for i in range(7):
            e(f"    v_mov_b32 v12, s{64+2*i}"); e(f"    v_mov_b32 v13, s{65+2*i}")
            e(f"    buffer_store_dwordx2 v[12:13], v14, s[32:35], s63 offen offset:{8*i}"); e("    s_nop 1")
        e("    s_mov_b64 exec, -1")

    def gen(self):
        p = self.p; e = self.e
        R = p["R"]; cons = p["cons"]
        pol = (" " + p["pol"]) if p["pol"] else ""
        T = 16; PS = 16384
        LD = R - 1
        mlld = 14 - LD
        mlpub = 1
        assert p["sigld"] + LD < T
        vM, vL, vMC, vT0 = 7, 8, 9, 5
        vHD, vHW, vSIG, vZ, vX, vL8 = 10, 11, 12, 13, 14, 15
        Q = 16; OWN = 16; vTCH = 22; ML = 24; PO = 30; F = 36; S = 40; ACC = 56; AV = 64; B = 80; RING = 112
        vLW = 4; vLR = 6; vOUT = 2
        NV = RING + 16 * R
        assert NV <= 256 and p["sigbar"] >= 2 and mlpub < mlld
        lds_m = 8192; lds_l = 8192 + 64; lds_s = 8192 + 128; LDS = 8192 + 128 + 64
        SLOW = 0x100000
        wsz = 0x800000 if p["stamps"] else 0x200000
        others = [s for s in range(4) if s != cons]
        sigval = "s40" if not p["force_slow"] else "0x7777"
        e(HEADER.rstrip())
        e(f"; @launch grid=(256,1,1) block=(256,1,1) lds={LDS}")
        e(DOC)
        e('.amdgcn_target "amdgcn-amd-amdhsa--gfx950"')
        e(".text"); e(f".globl {KN}_kernel"); e(".p2align 8"); e(f".type {KN}_kernel,@function"); e(f"{KN}_kernel:")
        self.stamp(0)
        e("    s_load_dwordx2 s[16:17], s[0:1], 8      ; k")
        e("    s_cmp_ge_u32 s2, 256")
        e("    s_cbranch_scc1 L_end")
        e("    v_lshrrev_b32 v5, 6, v0")
        e("    s_and_b32 s36, s2, 7")
        e("    v_readfirstlane_b32 s3, v5")
        if p["swz"]: e("    s_lshr_b32 s2, s2, 3")
        e("    v_and_b32 v6, 48, v0                    ; g*16")
        e("    s_lshl_b32 s36, s36, 5")
        e("    v_and_b32 v5, 15, v0")
        if p["swz"]: e("    s_or_b32 s2, s2, s36                    ; region")
        e("    v_lshl_add_u32 v2, v5, 6, v6")
        e("    s_lshl_b32 s44, s3, 12")
        e("    s_lshl_b32 s45, s2, 18")
        e("    s_add_u32 s44, s44, s45")
        e("    s_mov_b32 s18, 0x4000000")
        e("    s_mov_b32 s19, 0x20000")
        e("    s_mov_b32 s45, s44")
        e("    s_waitcnt lgkmcnt(0)")
        self.stamp(1)
        issued = []
        def buf(i): return RING + (i % R) * 16
        def issue(i):
            b = buf(i)
            va, srd, so = ("v2", "s[16:19]", 44) if i < T else ("v3", "s[20:23]", 45)
            for k in range(4):
                e(f"    buffer_load_dwordx4 v[{b+4*k}:{b+4*k+3}], {va}, {srd}, s{so} offen offset:{k*1024}{pol}")
                issued.append(("t", i))
            if i % T != T - 1: e(f"    s_add_u32 s{so}, s{so}, {PS}")
        def wait(tag):
            last = max(j for j, x in enumerate(issued) if x == tag)
            e(f"    s_waitcnt vmcnt({len(issued) - 1 - last})")
        issue(0)
        e("    s_load_dwordx2 s[24:25], s[0:1], 0      ; q")
        e("    s_load_dwordx2 s[20:21], s[0:1], 16     ; v")
        e("    s_load_dwordx2 s[28:29], s[0:1], 24     ; out")
        e("    s_load_dwordx2 s[12:13], s[0:1], 32     ; debug")
        e("    s_load_dwordx2 s[32:33], s[0:1], 40     ; ws")
        e("    v_and_b32 v1, 63, v0                    ; lane")
        e("    v_and_b32 v5, 3, v0")
        e("    v_lshl_add_u32 v4, v5, 8, v6")
        e(f"    v_lshlrev_b32 v{vHD}, 4, v5                ; head*16")
        e("    v_bfe_u32 v5, v0, 2, 2")
        e("    v_lshl_add_u32 v4, v5, 6, v4            ;    + quarter*64")
        e("    s_lshr_b32 s38, s2, 2                   ; pair")
        e("    s_lshl_b32 s39, s38, 10")
        for a, v in ((26, 0x10000), (27, 0x20000), (22, 0x4000000), (23, 0x20000), (30, 0x10000), (31, 0x20000), (34, wsz), (35, 0x20000)):
            e(f"    s_mov_b32 s{a}, 0x{v:x}")
        e("    v_lshlrev_b32 v3, 4, v1")
        e("    s_and_b32 s37, s2, 3                    ; split")
        e("    s_lshl_b32 s47, s3, 9")
        e("    s_lshl_b32 s48, s3, 3")
        e(f"    v_lshlrev_b32 v{vL8}, 3, v1                ; lane*8")
        e(f"    v_mov_b32 v{vZ}, 0")
        e("    s_waitcnt lgkmcnt(0)")
        e(f"    buffer_load_dwordx4 v[{Q}:{Q+3}], v4, s[24:27], s39 offen")
        issued.append(("q", 0))
        issue(1)
        e(f"    s_cmp_lg_u32 s37, {cons}")
        e("    s_cbranch_scc1 L_noclear")
        e("    s_lshl_b32 s50, s38, 14")
        for n, s in enumerate(others):
            e(f"    s_add_u32 s51, s50, {s*4096}")
            e(f"    s_add_u32 s{53+n}, s51, s47")
            e(f"    s_add_u32 s{56+n}, s51, s48")
        e(f"    v_mov_b32 v{ML}, -1")
        e(f"    v_mov_b32 v{ML+1}, -1")
        for n in range(3):
            e(f"    buffer_store_dwordx2 v[{ML}:{ML+1}], v{vL8}, s[32:35], s{53+n} offen")
        e("    s_mov_b64 exec, 1")
        for n in range(3):
            e(f"    buffer_store_dwordx2 v[{ML}:{ML+1}], v{vZ}, s[32:35], s{56+n} offen offset:2048")
        e("    s_mov_b64 exec, -1")
        e("L_noclear:")
        for i in range(2, LD): issue(i)
        e("    s_getreg_b32 s40, hwreg(HW_REG_XCC_ID, 0, 4)")
        e("    s_or_b32 s40, s40, 16")
        e("    s_lshl_b32 s36, s38, 1")
        e(f"    v_mov_b32 v{vSIG}, s36")
        e("    s_lshl_b32 s46, s2, 12")
        e("    s_add_u32 s48, s48, s46                 ; own slot: {m, l} at +2048")
        e("    s_add_u32 s47, s47, s46")
        e("    s_lshl_b32 s63, s3, 2")
        e(f"    v_add_u32 v{vHW}, s63, v{vHD}")
        e("    s_mov_b32 s60, 0x05040100")
        e("    s_mov_b32 s61, 0x07060302")
        c = (128 ** -0.5) * math.log2(math.e)
        e(f"    s_mov_b32 s62, 0x{f2u(c):08x}            ; scale*log2(e)")
        e("    s_mov_b32 s43, -2")
        e("    s_lshl_b32 s52, s3, 8")
        e("    s_add_u32 s52, s52, s39")
        def dpp(j):
            U = j >> 2; n = j & 3
            for x, q in enumerate(q for q in range(4) if q != n):
                ctl = f"row_shr:{4*(n-q)}" if n > q else f"row_shl:{4*(q-n)}"
                for t in range(4):
                    d = B + 16 * (j & 1) + 4 * t
                    dst = S + 4 * U + t if x == 2 else d + n
                    e(f"    v_add_f32_dpp v{dst}, v{d+q}, v{d+n} {ctl} row_mask:0xf bank_mask:0x{1 << n:x}")
        e("    ; ---- K phase")
        for j in range(T):
            wait(("q", 0) if j == 0 else ("t", j))
            if j == 0: self.stamp(2)
            if j == p["sigld"]:
                e(f"    global_load_ushort v{vX}, v{vSIG}, s[12:13] sc1")
                issued.append(("f", 0))
            issue(j + LD)
            for t in range(4):
                d = B + 16 * (j & 1) + 4 * t; b = buf(j) + 4 * t
                e(f"    v_mfma_f32_16x16x32_bf16 v[{d}:{d+3}], v[{b}:{b+3}], v[{Q}:{Q+3}], 0")
            if j > 0: dpp(j - 1)
            if j == p["sigbar"]:
                e("    ; consumer: the wait above covers every wave's slot markers; announce them once")
                e(f"    s_cmp_lg_u32 s37, {cons}")
                e("    s_cbranch_scc1 L_nosig")
                e("    s_barrier")
                e("    s_cmp_lg_u32 s3, 0")
                e("    s_cbranch_scc1 L_nosig")
                e("    s_mov_b64 exec, 1")
                e(f"    v_mov_b32 v{vT0}, s40")
                e(f"    global_store_short v{vSIG}, v{vT0}, s[12:13]")
                e("    s_mov_b64 exec, -1")
                e("L_nosig:")
        for j in range(16): e(f"    v_mov_b32 v{AV+j}, 0")
        dpp(T - 1)
        e(f"    v_max3_f32 v{vM}, v{S}, v{S+1}, v{S+2}")
        for j in range(3, 15, 2): e(f"    v_max3_f32 v{vM}, v{vM}, v{S+j}, v{S+j+1}")
        e(f"    v_max_f32 v{vM}, v{vM}, v{S+15}")
        def allred(op, r, t):
            e("    s_nop 1")
            e(f"    {op}_dpp v{r}, v{r}, v{r} row_ror:4 row_mask:0xf bank_mask:0xf")
            e("    s_nop 1")
            e(f"    {op}_dpp v{r}, v{r}, v{r} row_ror:8 row_mask:0xf bank_mask:0xf")
            e(f"    v_mov_b32 v{t}, v{r}")
            e("    s_nop 1")
            e(f"    v_permlane16_swap_b32 v{r}, v{t}")
            e(f"    {op} v{r}, v{r}, v{t}")
            e(f"    v_mov_b32 v{t}, v{r}")
            e("    s_nop 1")
            e(f"    v_permlane32_swap_b32 v{r}, v{t}")
            e(f"    {op} v{r}, v{r}, v{t}")
        allred("v_max_f32", vM, vT0)
        e("    s_mov_b64 exec, 15")
        e(f"    ds_write_b32 v{vHW}, v{vM} offset:{lds_m}")
        e(f"    ds_write_b32 v{vHW}, v{vX} offset:{lds_s}")
        e("    s_mov_b64 exec, -1")
        e("    s_lshl_b32 s63, s3, 11")
        e(f"    v_lshl_add_u32 v{vLW}, v1, 2, s63")
        e("    s_lshl_b32 s63, s3, 9")
        e(f"    v_lshl_add_u32 v{vLR}, v1, 2, s63")
        e(f"    v_and_b32 v{vOUT}, 15, v1")
        e(f"    v_lshrrev_b32 v{vT0}, 4, v1")
        e(f"    v_lshlrev_b32 v{vOUT}, 4, v{vOUT}")
        e(f"    v_lshl_add_u32 v{vOUT}, v{vT0}, 2, v{vOUT}")
        e("    s_waitcnt lgkmcnt(0)")
        e("    s_barrier")
        self.stamp(3)
        e(f"    ds_read_b128 v[{B}:{B+3}], v{vHD} offset:{lds_m}")
        e(f"    ds_read_b32 v{vX}, v{vZ} offset:{lds_s}")
        e("    s_waitcnt lgkmcnt(0)")
        e(f"    v_max3_f32 v{vM}, v{B}, v{B+1}, v{B+2}")
        e(f"    v_max_f32 v{vM}, v{vM}, v{B+3}")
        e(f"    v_mul_f32 v{vMC}, s62, v{vM}                 ; m*c")
        for j in range(T): e(f"    v_fma_f32 v{S+j}, v{S+j}, s62, -v{vMC}")
        for j in range(T): e(f"    v_exp_f32 v{S+j}, v{S+j}")
        e(f"    v_add_f32 v{vL}, v{S}, v{S+1}")
        for j in range(2, T): e(f"    v_add_f32 v{vL}, v{vL}, v{S+j}")
        for U in range(4):
            e(f"    v_cvt_pk_bf16_f32 v{S+4*U}, v{S+4*U}, v{S+4*U+1}")
            e(f"    v_cvt_pk_bf16_f32 v{S+4*U+1}, v{S+4*U+2}, v{S+4*U+3}")
        allred("v_add_f32", vL, vT0)
        e("    s_mov_b64 exec, 15")
        e(f"    ds_write_b32 v{vHW}, v{vL} offset:{lds_l}")
        e("    s_mov_b64 exec, -1")
        e(f"    v_readlane_b32 s49, v{vMC}, s3")
        def perms(u, ee, half=None):
            b = buf(T + u); j = ee >> 1; sel = "s61" if ee & 1 else "s60"; o = B + 4 * ee + 2 * (u & 1)
            if half in (None, 0): e(f"    v_perm_b32 v{o}, v{b+4+j}, v{b+j}, {sel}")
            if half in (None, 1): e(f"    v_perm_b32 v{o+1}, v{b+12+j}, v{b+8+j}, {sel}")
        def aprep(u):
            U = u >> 2
            for n in range(4):
                for x in range(4):
                    src = S + 4 * U + (x & 1); a = (u & 3) + (x >> 1)
                    ctl = "quad_perm:[0,1,2,3]" if a == n else (f"row_shr:{4*(n-a)}" if n > a else f"row_shl:{4*(a-n)}")
                    e(f"    v_mov_b32_dpp v{AV+4*n+x}, v{src} {ctl} row_mask:0xf bank_mask:0x{1 << n:x}")
        def mfma(u, ee):
            a = ACC + 4 * (ee & 1); n = ee >> 1
            cin = "0" if (u == 1 and ee < 2) else f"v[{a}:{a+3}]"
            e(f"    v_mfma_f32_16x16x32_bf16 v[{a}:{a+3}], v[{AV+4*n}:{AV+4*n+3}], v[{B+4*ee}:{B+4*ee+3}], {cin}")
        def ml_loads():
            for n in range(3):
                e(f"    buffer_load_dwordx2 v[{ML+2*n}:{ML+2*n+1}], v{vZ}, s[32:35], s{56+n} offen offset:2048 sc1")
        def o_loads():
            for n in range(3):
                e(f"    buffer_load_dwordx2 v[{PO+2*n}:{PO+2*n+1}], v{vL8}, s[32:35], s{53+n} offen sc1")
        e("    ; ---- V phase")
        for u in range(T - 1):
            wait(("t", T + u))
            if u == mlld:
                e("    ; four loads on either role: the producers' {m,l} and the output page / the own slot lines")
                e(f"    s_cmp_lg_u32 s37, {cons}")
                e("    s_cbranch_scc1 L_mlp")
                ml_loads()
                e(f"    buffer_load_dword v{vTCH}, v{vZ}, s[28:31], s52 offen")
                e("    s_branch L_mlq")
                e("L_mlp:")
                e(f"    buffer_load_dwordx2 v[{vTCH}:{vTCH+1}], v{vL8}, s[32:35], s47 offen sc1")
                for n in range(3):
                    e(f"    buffer_load_dword v{vTCH}, v{vZ}, s[32:35], s47 offen sc1")
                e("L_mlq:")
                issued.extend([("ml", 0)] * 4)
            if T + u + LD < 2 * T: issue(T + u + LD)
            for ee in range(8): perms(u, ee)
            if u & 1:
                for ee in range(8): mfma(u, ee)
            else:
                aprep(u)
            if u == 0:
                e("    s_waitcnt lgkmcnt(0)")
                e("    s_barrier")
                e("    s_lshl_b32 s63, s3, 4")
                e(f"    v_mov_b32 v{vT0}, s63")
                e(f"    ds_read_b128 v[{F}:{F+3}], v{vT0} offset:{lds_l}")
                e(f"    v_mov_b32 v{OWN+2}, s49")
                e("    s_waitcnt lgkmcnt(0)")
                e(f"    v_add_f32 v{F}, v{F}, v{F+1}")
                e(f"    v_add_f32 v{F+2}, v{F+2}, v{F+3}")
                e(f"    v_min_u32 v{OWN+2}, s43, v{OWN+2}")
                e(f"    v_add_f32 v{OWN+3}, v{F}, v{F+2}")
                e(f"    v_min_u32 v{OWN+3}, s43, v{OWN+3}")
            if u == mlpub:
                e(f"    v_readfirstlane_b32 s41, v{vX}")
                e(f"    s_cmp_eq_u32 s37, {cons}")
                e("    s_cbranch_scc1 L_nopub")
                e(f"    s_cmp_lg_u32 s41, {sigval}")
                e("    s_cbranch_scc1 L_nopub")
                e("    s_mov_b64 exec, 1")
                e(f"    buffer_store_dwordx2 v[{OWN+2}:{OWN+3}], v{vZ}, s[32:35], s48 offen offset:2048")
                e("    s_mov_b64 exec, -1")
                e("L_nopub:")
        def last_piece(shadow=None):
            u = T - 1
            e("    s_waitcnt vmcnt(2)")
            for ee in range(8): perms(u, ee, 0)
            e("    s_waitcnt vmcnt(0)")
            self.stamp(4)
            for ee in range(3): perms(u, ee, 1)
            for ee in range(8):
                mfma(u, ee)
                if ee + 3 < 8: perms(u, ee + 3, 1)
            if shadow:
                shadow()
                e("    s_nop 4")
            else:
                e("    s_nop 7")
            for h in range(4):
                e(f"    ds_write2st64_b32 v{vLW}, v{ACC+h}, v{ACC+4+h} offset0:{2*h} offset1:{2*h+1}")
            e("    s_waitcnt lgkmcnt(0)")
            e("    s_barrier")
            for w in range(4):
                e(f"    ds_read2st64_b32 v[{B+2*w}:{B+2*w+1}], v{vLR} offset0:{8*w} offset1:{8*w+1}")
            e("    s_waitcnt lgkmcnt(2)")
            e(f"    v_pk_add_f32 v[{B}:{B+1}], v[{B}:{B+1}], v[{B+2}:{B+3}]")
            e("    s_waitcnt lgkmcnt(0)")
            e(f"    v_pk_add_f32 v[{B+4}:{B+5}], v[{B+4}:{B+5}], v[{B+6}:{B+7}]")
            e(f"    v_pk_add_f32 v[{OWN}:{OWN+1}], v[{B}:{B+1}], v[{B+4}:{B+5}]")
        def ml_check():
            e(f"    v_max3_u32 v{vX}, v{ML}, v{ML+1}, v{ML+2}")
            e(f"    v_max3_u32 v{vX}, v{vX}, v{ML+3}, v{ML+4}")
            e(f"    v_max_u32 v{vX}, v{vX}, v{ML+5}")
            e(f"    v_cmp_eq_u32 vcc, -1, v{vX}")
        def factors():
            ms = [OWN + 2] + [ML + 2 * n for n in range(3)]
            ls = [OWN + 3] + [ML + 2 * n + 1 for n in range(3)]
            e(f"    v_max3_f32 v{vM}, v{ms[0]}, v{ms[1]}, v{ms[2]}")
            e(f"    v_max_f32 v{vM}, v{vM}, v{ms[3]}")
            for s in range(4): e(f"    v_sub_f32 v{F+s}, v{ms[s]}, v{vM}")
            for s in range(4): e(f"    v_exp_f32 v{F+s}, v{F+s}")
            e("    s_nop 0")
            e(f"    v_mul_f32 v{vL}, v{F}, v{ls[0]}")
            for s in range(1, 4): e(f"    v_fmac_f32 v{vL}, v{F+s}, v{ls[s]}")
            e(f"    v_rcp_f32 v{vL}, v{vL}")
            e("    s_nop 0")
            for s in range(4): e(f"    v_mul_f32 v{F+s}, v{F+s}, v{vL}")
        def flag_check(tag):
            e("    s_sub_u32 s59, s59, 1")
            e(f"    s_cbranch_scc1 L_have{tag}")
            e("    s_and_b32 s41, s59, 7")
            e(f"    s_cbranch_scc1 L_re{tag}")
            e(f"    global_load_ushort v{vX}, v{vSIG}, s[12:13] offset:128 sc1")
            e("    s_waitcnt vmcnt(0)")
            e(f"    v_readfirstlane_b32 s41, v{vX}")
            for n in range(3):
                e(f"    s_bitcmp1_b32 s41, {n}")
                e(f"    s_cselect_b32 s42, 0x{SLOW:x}, 0")
                e(f"    s_or_b32 s{53+n}, s{53+n}, s42")
                e(f"    s_or_b32 s{56+n}, s{56+n}, s42")
            e(f"L_re{tag}:")
        e(f"    s_cmp_lg_u32 s37, {cons}")
        e("    s_cbranch_scc1 L_prod")
        e(f"    s_mov_b32 s59, 0x{p['bound']:x}")
        ml_check()
        e("    s_mov_b32 s51, 0")
        e("    s_cbranch_vccz L_mlok")
        e("    s_mov_b32 s51, 1                        ; some {m,l} still missing: fetch it after the own result")
        e("L_mlok:")
        factors()
        last_piece(o_loads)
        e("    s_cmp_eq_u32 s51, 0")
        e("    s_cbranch_scc1 L_scale")
        e("L_pollA:")
        flag_check("A")
        ml_loads()
        e("    s_waitcnt vmcnt(0)")
        ml_check()
        e("    s_cbranch_vccnz L_pollA")
        e("L_haveA:")
        factors()
        o_loads()
        e("L_scale:")
        e(f"    v_mul_f32 v{OWN}, v{F}, v{OWN}")
        e(f"    v_mul_f32 v{OWN+1}, v{F}, v{OWN+1}")
        e("L_pollB:")
        e("    s_waitcnt vmcnt(0)")
        e(f"    v_max3_u32 v{vX}, v{PO}, v{PO+1}, v{PO+2}")
        e(f"    v_fma_f32 v{B}, v{F+1}, v{PO}, v{OWN}")
        e(f"    v_fma_f32 v{B+1}, v{F+1}, v{PO+1}, v{OWN+1}")
        e(f"    v_max3_u32 v{vX}, v{vX}, v{PO+3}, v{PO+4}")
        e(f"    v_fmac_f32 v{B}, v{F+2}, v{PO+2}")
        e(f"    v_fmac_f32 v{B+1}, v{F+2}, v{PO+3}")
        e(f"    v_max_u32 v{vX}, v{vX}, v{PO+5}")
        e(f"    v_fmac_f32 v{B}, v{F+3}, v{PO+4}")
        e(f"    v_fmac_f32 v{B+1}, v{F+3}, v{PO+5}")
        e(f"    v_cmp_eq_u32 vcc, -1, v{vX}")
        e(f"    v_cvt_pk_bf16_f32 v{B}, v{B}, v{B+1}")
        e("    s_cbranch_vccz L_haveB")
        flag_check("B")
        o_loads()
        e("    s_branch L_pollB")
        e("L_haveB:")
        e(f"    buffer_store_dword v{B}, v{vOUT}, s[28:31], s52 offen")
        self.stamp(5); self.flush_stamps()
        e("    s_endpgm")
        e("L_prod:")
        last_piece()
        e(f"    v_min_u32 v{OWN}, s43, v{OWN}")
        e(f"    v_min_u32 v{OWN+1}, s43, v{OWN+1}")
        e(f"    s_cmp_lg_u32 s41, {sigval}")
        e("    s_cbranch_scc1 L_slow")
        e(f"    buffer_store_dwordx2 v[{OWN}:{OWN+1}], v{vL8}, s[32:35], s47 offen")
        self.stamp(5); self.flush_stamps()
        e("    s_endpgm")
        e("L_slow:")
        e(f"    s_or_b32 s47, s47, 0x{SLOW:x}")
        e(f"    s_or_b32 s48, s48, 0x{SLOW:x}")
        e(f"    buffer_store_dwordx2 v[{OWN}:{OWN+1}], v{vL8}, s[32:35], s47 offen sc1")
        e("    s_mov_b64 exec, 1")
        e(f"    buffer_store_dwordx2 v[{OWN+2}:{OWN+3}], v{vZ}, s[32:35], s48 offen offset:2048 sc1")
        e(f"    s_cmp_gt_u32 s37, {cons}")
        e("    s_subb_u32 s41, s37, 0")
        e("    s_and_b32 s42, s38, 1")
        e("    s_lshl_b32 s42, s42, 4")
        e("    s_add_u32 s41, s41, s42")
        e("    s_lshl_b32 s41, 1, s41")
        e("    s_andn2_b32 s42, s36, 3")
        e(f"    v_mov_b32 v{vSIG}, s42")
        e(f"    v_mov_b32 v{vX}, s41")
        e("    s_waitcnt vmcnt(0)")
        e("    s_barrier")
        e("    s_cmp_lg_u32 s3, 0")
        e("    s_cbranch_scc1 L_flagged")
        e(f"    global_atomic_or v{vSIG}, v{vX}, s[12:13] offset:128 sc1")
        e("L_flagged:")
        e("    s_mov_b64 exec, -1")
        self.stamp(5); self.flush_stamps()
        e("L_end:")
        e("    s_endpgm")
        nv = max(NV, p["vg"])
        e('.section .rodata,"a"'); e(".p2align 6"); e(f".amdhsa_kernel {KN}_kernel")
        e(f"  .amdhsa_next_free_vgpr {nv}"); e(f"  .amdhsa_next_free_sgpr {90 if p['stamps'] else 64}"); e(f"  .amdhsa_accum_offset {min(256, (nv+3)//4*4)}")
        e("  .amdhsa_group_segment_fixed_size 0"); e("  .amdhsa_kernarg_size 48"); e("  .amdhsa_user_sgpr_count 2")
        e("  .amdhsa_user_sgpr_kernarg_segment_ptr 1"); e("  .amdhsa_system_sgpr_workgroup_id_x 1"); e(".end_amdhsa_kernel")
        return "\n".join(self.L) + "\n"

if __name__ == "__main__":
    kw = {}; out = None
    for a in sys.argv[1:]:
        if "=" in a:
            k, v = a.split("=", 1); kw[k] = int(v, 0) if v.lstrip("-").replace("0x","").isdigit() else v
        else: out = a
    open(out, "w").write(G(**kw).gen())
```
